```python
import torch

def _softmax(x, axis=-1):
    return torch.softmax(x, dim=axis)
def _gelu(x):
    return torch.nn.functional.gelu(x, approximate="tanh")
def _silu(x):
    return torch.nn.functional.silu(x)
def _sigmoid(x):
    return torch.sigmoid(x)
def _layernorm(x, axis=-1, eps=1e-5):
    m = x.mean(dim=axis, keepdim=True)
    v = x.var(dim=axis, keepdim=True, unbiased=False)
    return (x - m) / torch.sqrt(v + eps)
def _scatter_add(tgt, idx, src, axis=0):
    return tgt.clone().index_add_(axis, idx, src)
def _segment_sum(src, seg, n):
    out = torch.zeros((n,) + src.shape[1:], dtype=src.dtype)
    return out.index_add_(0, seg, src)
def _pad(x, pw):
    flat = tuple(v for pair in reversed(pw) for v in pair)
    return torch.nn.functional.pad(x, flat)

kernel_name = 'parallel_sum__softmax_full_mha__dense_activation_silu__prompt'

def setup_inputs():

    _w = (lambda a: (lambda t: t.to(torch.bfloat16) if t.is_floating_point() else t)(torch.as_tensor(a)))
    def _A_setup():
        B, S, D = 1, 2048, 640
        return {
            "x": _w((lambda *s: torch.randn(*s, dtype=torch.bfloat16) * 0.05)(B, S, D)),
            "wqkv": _w((lambda *s: torch.randn(*s, dtype=torch.bfloat16) * 0.05)(D, 3 * D)),
            "wo": _w((lambda *s: torch.randn(*s, dtype=torch.bfloat16) * 0.05)(D, D)),
        }
    _A_in = _A_setup()

    def _B_setup():
        B, S, D, F = 1, 2048, 640, 1728
        return {
            "x": _w((lambda *s: torch.randn(*s, dtype=torch.bfloat16) * 0.05)(B, S, D)),
            "w1": _w((lambda *s: torch.randn(*s, dtype=torch.bfloat16) * 1.6)(D, F) * (D ** -0.5)),
            "w2": _w((lambda *s: torch.randn(*s, dtype=torch.bfloat16) * 0.2)(F, D) * (F ** -0.5)),
        }
    _B_in = _B_setup()

    return {
        "A_x": _A_in["x"],
        "A_wqkv": _A_in["wqkv"],
        "A_wo": _A_in["wo"],
        "B_x": _B_in["x"],
        "B_w1": _B_in["w1"],
        "B_w2": _B_in["w2"],
    }

def reference(A_x, A_wqkv, A_wo, B_x, B_w1, B_w2):
    def _A_ref(x, wqkv, wo):
        B, S, D = x.shape
        H = 32; Dh = D // H
        qkv = (lambda x, *d: x.permute(*d))((x @ wqkv).reshape(B, S, 3, H, Dh), 2, 0, 3, 1, 4)
        q, k, v = qkv[0], qkv[1], qkv[2]
        scale = Dh ** -0.5
        scores = torch.einsum("bhqd,bhkd->bhqk", q, k) * scale
        p = _softmax(scores, axis=-1)
        o = torch.einsum("bhqk,bhkd->bhqd", p, v)
        return (lambda x, *d: x.permute(*d))(o, 0, 2, 1, 3).reshape(B, S, D) @ wo

    def _B_ref(x, w1, w2):
        h = torch.einsum("bsd,df->bsf", x, w1)
        h = _silu(h)
        out = torch.einsum("bsf,fd->bsd", h, w2)
        return out

    x = A_x
    xn = _layernorm(x, axis=-1)
    return x + _A_ref(xn, A_wqkv, A_wo) + _B_ref(xn, B_w1, B_w2)
```

```python
import re

def v(i, n=1):
    return "v%d" % i if n == 1 else "v[%d:%d]" % (i, i + n - 1)
def s(i, n=1):
    return "s%d" % i if n == 1 else "s[%d:%d]" % (i, i + n - 1)

class Asm:
    def __init__(self):
        self.L = []
    def __call__(self, *lines):
        for ln in lines:
            if isinstance(ln, (list, tuple)):
                self(*ln)
            else:
                for x in ln.split("\n"):
                    x = x.strip()
                    if x:
                        self.L.append(x)
    def label(self, name):
        self.L.append(name + ":")
    def text(self):
        out = []
        for x in self.L:
            if x.endswith(":") or x.startswith("."):
                out.append(x)
            else:
                out.append("    " + x)
        return "\n".join(out) + "\n"

def interleave(main, fill, start=0, per=None):
    out = []
    n = len(main) - start
    k = 0
    for i, m in enumerate(main):
        out.append(m)
        if i >= start:
            if per is not None:
                tgt = min(len(fill), (i - start + 1) * per)
            else:
                tgt = ((i - start + 1) * len(fill) + n - 1) // n
            while k < tgt:
                out.append(fill[k]); k += 1
    while k < len(fill):
        out.append(fill[k]); k += 1
    return out

TRANS = ("v_exp_f32", "v_log_f32", "v_rcp_f32", "v_rsq_f32", "v_sqrt_f32", "v_sin_f32", "v_cos_f32", "v_exp_f16", "v_rcp_iflag_f32")
def passes(op):
    if "32x32x16" in op or "32x32x8" in op: return 8
    if "16x16x32" in op or "16x16x16" in op: return 4
    if "_2b_" in op: return 16
    if "_4b_" in op: return 8
    if "_16b_" in op: return 2
    raise ValueError(op)
_R = re.compile(r"^(-|abs\()?([vsa])(\d+|\[(\d+):(\d+)\])\)?$")
def regs(tok):
    tok = tok.strip()
    if tok in ("vcc", "exec", "m0", "vcc_lo", "vcc_hi", "exec_lo", "exec_hi"):
        return {tok.split("_")[0]}
    m = _R.match(tok)
    if not m: return set()
    k = m.group(2)
    if m.group(4) is not None:
        return {"%s%d" % (k, i) for i in range(int(m.group(4)), int(m.group(5)) + 1)}
    return {"%s%s" % (k, m.group(3))}

class I:
    pass
def parse(line):
    line = line.split(";")[0].split("//")[0].strip()
    if not line or line.endswith(":") or line.startswith("."): return None
    p = line.split(None, 1)
    op = p[0]
    rest = p[1] if len(p) > 1 else ""
    ops = [x.strip() for x in rest.split(",")] if rest else []
    mods = ""
    if ops:
        last = ops[-1].split()
        if len(last) > 1:
            ops[-1] = last[0]; mods = " ".join(last[1:])
    i = I(); i.op = op; i.line = line; i.w = set(); i.r = set(); i.kind = "other"; i.ws = 1
    i.A = i.B = i.C = set(); i.mods = mods
    base = op.replace("_e32", "").replace("_e64", "").replace("_sdwa", "").replace("_dpp", "")
    i.base = base
    if op == "s_nop":
        i.ws = int(ops[0], 0) + 1; i.kind = "nop"; return i
    if op.startswith("v_mfma"):
        i.kind = "mfma"; i.p = passes(op)
        i.w = regs(ops[0]); i.A = regs(ops[1]); i.B = regs(ops[2]); i.C = regs(ops[3]); i.r = i.A | i.B | i.C
        return i
    if op.startswith("v_"):
        i.kind = "valu"
        i.dpp = ("row_" in mods or "quad_perm" in mods or "wave_" in mods or op.endswith("_dpp"))
        if base.startswith("v_cmp"):
            i.w = regs(ops[0]); srcs = ops[1:]
        elif base in ("v_add_co_u32", "v_sub_co_u32", "v_addc_co_u32", "v_subb_co_u32"):
            i.w = regs(ops[0]) | regs(ops[1]); srcs = ops[2:]
        elif base.startswith("v_permlane") and "swap" in base:
            i.w = regs(ops[0]) | regs(ops[1]); srcs = ops
        elif base in ("v_fmac_f32", "v_dot2c_f32_bf16", "v_pk_fmac_f16") or "dst_unused:UNUSED_PRESERVE" in mods or i.dpp:
            i.w = regs(ops[0]); srcs = ops
        else:
            i.w = regs(ops[0]); srcs = ops[1:]
        for x in srcs: i.r |= regs(x)
        if base == "v_cndmask_b32" and len(ops) == 3: i.r |= {"vcc"}
        return i
    if op.startswith("ds_"):
        i.kind = "ds"
        if op.startswith("ds_read") or op.startswith("ds_swizzle") or "permute" in op or "_rtn" in op:
            i.w = regs(ops[0])
            for x in ops[1:]: i.r |= regs(x)
        else:
            for x in ops: i.r |= regs(x)
        return i
    if op.startswith("buffer_") or op.startswith("global_"):
        i.kind = "vmem"
        i.lds = bool(re.search(r"\blds\b", mods)) or "_lds_" in op
        if "load" in op and not i.lds:
            i.w = regs(ops[0])
            for x in ops[1:]: i.r |= regs(x)
        else:
            for x in ops: i.r |= regs(x)
            if "atomic" in op and "sc0" in mods: i.w = regs(ops[0])
        i.store_data = set()
        if "store" in op and ("x4" in op or "x3" in op):
            i.store_data = regs(ops[0]) if op.startswith("buffer_") else regs(ops[1])
        if i.lds: i.r |= {"m0"}
        return i
    if op.startswith("s_"):
        i.kind = "salu"
        if op.startswith(("s_cmp", "s_cbranch", "s_branch", "s_waitcnt", "s_barrier", "s_setprio", "s_endpgm", "s_sleep", "s_bitcmp")):
            for x in ops: i.r |= regs(x)
        else:
            if ops: i.w = regs(ops[0])
            for x in ops[1:]: i.r |= regs(x)
            if "saveexec" in op: i.w |= {"exec"}
        return i
    raise ValueError("unknown instr: " + line)

def check(lines, name=""):
    ins = [x for x in (parse(l) for l in lines) if x is not None]
    errs = []
    T_valu = {2: 5, 4: 8, 8: 12, 16: 20}
    T_c = {2: 4, 4: 6, 8: 10, 16: 18}
    T_war = {2: 1, 4: 3, 8: 7, 16: 15}
    for j, c in enumerate(ins):
        dist = 0
        for k in range(j - 1, max(-1, j - 24), -1):
            p = ins[k]
            need = 0; why = ""
            isv = lambda S: {x for x in S if x[0] in "va" and x not in ("vcc",)}
            iss = lambda S: {x for x in S if x[0] == "s" or x == "vcc"}
            if p.kind == "valu":
                wv = isv(p.w); wsg = iss(p.w)
                if c.kind == "mfma" and wv & c.r: need, why = 2, "valu->mfma"
                if c.kind == "valu":
                    if p.base in TRANS and c.base not in TRANS and wv & c.r: need, why = max(need, 1), "trans->valu"
                    if c.base in ("v_readfirstlane_b32", "v_readlane_b32") and wv & c.r: need, why = max(need, 1), "valu->readlane"
                    if c.base.startswith("v_permlane") and wv & c.r: need, why = max(need, 2), "valu->permlane"
                    if c.dpp and wv & c.r: need, why = max(need, 2), "valu->dpp"
                    if wsg & c.r: need, why = max(need, 2), "valu sgpr->valu"
                    if ("op_sel" in p.mods or "dst_sel" in p.mods) and (wv & (c.r | c.w)): need, why = max(need, 1), "opsel->valu"
                if c.kind == "vmem" and wsg & c.r: need, why = max(need, 5), "valu sgpr->vmem"
            if p.kind == "mfma":
                D = p.w
                if c.kind == "mfma":
                    if D & (c.A | c.B): need, why = T_valu[p.p], "mfma D->AB"
                    if D & c.C:
                        if not (D == c.C and p.p == c.p):
                            if T_c[p.p] > need: need, why = T_c[p.p], "mfma D->C overlap"
                        elif p.p == 2: need = max(need, 2)
                    elif D & c.w and not (D & c.C):
                        pass
                elif c.kind in ("valu", "ds", "vmem"):
                    if D & (c.r | c.w): need, why = T_valu[p.p], "mfma D->valu/mem"
                    if c.kind == "valu" and p.C & c.w and T_war[p.p] > need: need, why = T_war[p.p], "mfma C WAR"
            if p.kind == "salu" and "m0" in p.w and c.kind == "vmem" and c.lds: need, why = max(need, 1), "m0->dma"
            if p.kind == "vmem" and p.store_data and (p.store_data & c.w):
                need, why = max(need, 2 if c.kind == "valu" else 1), "store data WAR"
            if need > dist:
                errs.append("%s: need %d have %d (%s): [%s] -> [%s]" % (name, need, dist, why, p.line, c.line))
            dist += p.ws
            if dist >= 21: break
    return errs
```

```python
import sys, struct
from asmlib import *

NAME = "parallel_sum__softmax_full_mha__dense_activation_silu__prompt"
SLOT = 163840
CHUNK = 20480
WS_XF = 64 * SLOT
XF_BYTES = 64 * 148 * 1024
WS_XN = 0x1400000
X_BYTES = 2048 * 1280
QSCALE = (20 ** -0.5) * 1.4426950408889634
def f2u(x): return struct.unpack("<I", struct.pack("<f", x))[0]

def srd(a, d, lo, hi, nbytes, off=0):
    if off:
        a("s_add_u32 s%d, s%d, 0x%x" % (d, lo, off), "s_addc_u32 s%d, s%d, 0" % (d + 1, hi))
    else:
        a("s_mov_b32 s%d, s%d" % (d, lo), "s_mov_b32 s%d, s%d" % (d + 1, hi))
    a("s_mov_b32 s%d, 0x%x" % (d + 2, nbytes), "s_mov_b32 s%d, 0x00020000" % (d + 3))

def descriptor(name, vgpr, sgpr=96):
    acc = (vgpr + 3) // 4 * 4
    return """.section .rodata,"a"
.p2align 6
.amdhsa_kernel %s
  .amdhsa_next_free_vgpr %d
  .amdhsa_next_free_sgpr %d
  .amdhsa_accum_offset %d
  .amdhsa_group_segment_fixed_size 0
  .amdhsa_kernarg_size 72
  .amdhsa_user_sgpr_count 2
  .amdhsa_user_sgpr_kernarg_segment_ptr 1
  .amdhsa_system_sgpr_workgroup_id_x 1
  .amdhsa_float_denorm_mode_32 3
.end_amdhsa_kernel
.text
""" % (name, vgpr, sgpr, acc)

def swz_reduce_add(a, r, t):
    for off in (0x041F, 0x081F, 0x101F, 0x201F, 0x401F):
        a("ds_swizzle_b32 v%d, v%d offset:0x%04x" % (t, r, off), "s_waitcnt lgkmcnt(0)", "v_add_f32 v%d, v%d, v%d" % (r, r, t))

def k_ln():
    a = Asm()
    a("s_cmp_ge_u32 s2, 256", "s_cbranch_scc1 L_ln_end")
    a("s_load_dwordx2 s[4:5], s[0:1], 0", "s_load_dwordx2 s[6:7], s[0:1], 64")
    a("v_lshrrev_b32 v1, 5, v0", "v_and_b32 v2, 31, v0", "s_lshl_b32 s3, s2, 3", "v_add_u32 v1, s3, v1",
      "v_mul_u32_u24 v1, 1280, v1", "v_lshl_add_u32 v3, v2, 4, v1", "v_lshl_add_u32 v4, v2, 3, v1")
    a("s_waitcnt lgkmcnt(0)")
    srd(a, 8, 4, 5, X_BYTES)
    srd(a, 12, 6, 7, X_BYTES, WS_XN)
    a("buffer_load_dwordx4 v[8:11], v3, s[8:11], 0 offen",
      "buffer_load_dwordx4 v[12:15], v3, s[8:11], 0 offen offset:512",
      "buffer_load_dwordx2 v[16:17], v4, s[8:11], 0 offen offset:1024",
      "s_waitcnt vmcnt(0)")
    for i in range(10):
        a("v_lshlrev_b32 v%d, 16, v%d" % (20 + 2 * i, 8 + i), "v_and_b32 v%d, 0xffff0000, v%d" % (21 + 2 * i, 8 + i))
    a("v_add_f32 v5, v20, v21")
    for i in range(2, 20): a("v_add_f32 v5, v5, v%d" % (20 + i))
    swz_reduce_add(a, 5, 6)
    a("v_mul_f32 v5, 0x%08x, v5" % f2u(1.0 / 640))
    for i in range(20): a("v_sub_f32 v%d, v%d, v5" % (20 + i, 20 + i))
    a("v_mul_f32 v7, v20, v20")
    for i in range(1, 20): a("v_fmac_f32 v7, v%d, v%d" % (20 + i, 20 + i))
    swz_reduce_add(a, 7, 6)
    a("v_mov_b32 v6, 0x%08x" % f2u(1e-5), "v_fmac_f32 v6, 0x%08x, v7" % f2u(1.0 / 640), "v_rsq_f32 v6, v6", "s_nop 0")
    for i in range(20): a("v_mul_f32 v%d, v%d, v6" % (20 + i, 20 + i))
    for i in range(10): a("v_cvt_pk_bf16_f32 v%d, v%d, v%d" % (8 + i, 20 + 2 * i, 21 + 2 * i))
    a("buffer_store_dwordx4 v[8:11], v3, s[12:15], 0 offen",
      "buffer_store_dwordx4 v[12:15], v3, s[12:15], 0 offen offset:512",
      "buffer_store_dwordx2 v[16:17], v4, s[12:15], 0 offen offset:1024")
    a.label("L_ln_end")
    a("s_endpgm")
    return a, 40

XR, WAR, WBR = 0, 49152, 98304
def k_gemm1():
    a = Asm()
    a("s_cmp_ge_u32 s2, 256", "s_cbranch_scc1 L_g1_end")
    a("s_load_dwordx2 s[4:5], s[0:1], 64", "s_load_dwordx2 s[6:7], s[0:1], 8", "s_load_dwordx2 s[28:29], s[0:1], 32")
    a("s_and_b32 s3, s2, 7", "s_lshr_b32 s27, s2, 3",
      "s_and_b32 s24, s3, 1", "s_lshl_b32 s24, s24, 3", "s_and_b32 s30, s27, 7", "s_add_u32 s24, s24, s30",
      "s_lshr_b32 s25, s3, 1", "s_lshl_b32 s25, s25, 2", "s_lshr_b32 s30, s27, 3", "s_add_u32 s25, s25, s30",
      "s_cmp_ge_u32 s25, 15", "s_cbranch_scc1 L_g1_end")
    a("v_lshrrev_b32 v1, 6, v0", "v_and_b32 v2, 63, v0", "v_readfirstlane_b32 s26, v1")
    a("s_waitcnt lgkmcnt(0)")
    srd(a, 8, 4, 5, X_BYTES, WS_XN)
    srd(a, 12, 6, 7, 640 * 3840)
    srd(a, 16, 28, 29, 640 * 3456)
    srd(a, 20, 4, 5, WS_XF + XF_BYTES)
    a("s_cmp_eq_u32 s25, 14", "s_cselect_b32 s18, 0, s18")
    a("s_cmp_ge_u32 s26, 4", "s_cbranch_scc1 L_g1_loader")
    a("s_lshr_b32 s31, s26, 1", "s_and_b32 s32, s26, 1")
    a("v_and_b32 v3, 31, v2", "v_lshrrev_b32 v4, 5, v2")
    a("s_lshl_b32 s33, s31, 13", "v_lshlrev_b32 v5, 7, v3", "v_add_u32 v5, s33, v5",
      "v_bfe_u32 v6, v3, 1, 3", "v_xor_b32 v6, v6, v4", "v_lshl_add_u32 v8, v6, 4, v5")
    for st in range(1, 4): a("v_xor_b32 v%d, %d, v8" % (8 + st, 32 * st))
    a("v_bfe_u32 v5, v2, 2, 2",
      "v_lshl_add_u32 v6, v4, 3, v5", "v_lshlrev_b32 v6, 8, v6",
      "v_bfe_u32 v7, v2, 4, 1", "v_lshl_add_u32 v6, v7, 5, v6",
      "v_and_b32 v7, 3, v2", "v_lshl_add_u32 v6, v7, 3, v6",
      "s_lshl_b32 s33, s32, 1")
    for c in range(2):
        a("s_add_u32 s34, s33, %d" % c, "v_xor_b32 v7, s34, v5", "v_lshl_add_u32 v7, v7, 6, v6",
          "v_add_u32 v%d, %d, v7" % (12 + c, WAR), "v_add_u32 v%d, %d, v7" % (14 + c, WBR))
    a("s_lshr_b32 s35, s24, 1", "s_mul_i32 s35, s35, %d" % CHUNK,
      "s_and_b32 s36, s24, 1", "s_lshl_b32 s36, s36, 2", "s_lshl_b32 s37, s31, 1", "s_add_u32 s36, s36, s37")
    a("s_lshl_b32 s38, s24, 2", "s_add_u32 s38, s38, s37", "s_mul_i32 s38, s38, 148", "s_lshl_b32 s39, s25, 3", "s_add_u32 s38, s38, s39",
      "s_lshl_b32 s39, s32, 2", "s_add_u32 s38, s38, s39", "s_add_u32 s38, s38, 40", "s_lshl_b32 s38, s38, 10", "s_add_u32 s38, s38, 0x%x" % WS_XF,
      "s_add_u32 s39, s38, %d" % (148 * 1024))
    a("v_lshlrev_b32 v96, 4, v2")
    a("s_cmp_ge_u32 s25, 10", "s_cbranch_scc1 L_g1_v")

    def acc(part, rt, ct): return 128 + 16 * (4 * part + 2 * rt + ct)
    def xf(b, rt): return 16 + 8 * b + 4 * rt
    def wf(b, part, ct): return 32 + 16 * b + 8 * part + 4 * ct
    def reads(t, st):
        b = (4 * t + st) & 1
        so = (t % 3) * 16384
        X = ["ds_read_b128 %s, v%d offset:%d" % (v(xf(b, rt), 4), 8 + st, so + rt * 4096) for rt in range(2)]
        W = {}
        for part in range(2):
            for ct in range(2):
                W[part, ct] = ["ds_read_b64_tr_b16 %s, v%d offset:%d" % (v(wf(b, part, ct) + 2 * u, 2), 12 + 2 * part + ct, so + st * 4096 + u * 1024) for u in range(2)]
        return [X[0]] + W[0, 0] + [X[1]] + W[0, 1] + W[1, 0] + W[1, 1]
    def mainloop(swap_a):
        a("s_barrier")
        a(reads(0, 0))
        for t in range(10):
            for st in range(4):
                b = (4 * t + st) & 1
                M = []
                for part in range(2):
                    for ct in range(2):
                        for rt in range(2):
                            d = v(acc(part, rt, ct), 16)
                            c = "0" if (t == 0 and st == 0) else d
                            A, B = v(wf(b, part, ct), 4), v(xf(b, rt), 4)
                            if part == 0 and swap_a: A, B = B, A
                            M.append("v_mfma_f32_32x32x16_bf16 %s, %s, %s, %s" % (d, A, B, c))
                a("s_waitcnt lgkmcnt(0)")
                if st == 3 and t < 9: a("s_barrier")
                nxt = reads(t, st + 1) if st < 3 else (reads(t + 1, 0) if t < 9 else [])
                a(interleave(M, nxt, per=2))
        a("s_nop 7", "s_nop 7")
    def silu_store():
        a("s_mov_b32 s40, 0x%08x" % f2u(-1.4426950408889634), "s_mov_b32 s41, s40")
        a("s_lshl_b32 s42, s25, 2", "s_lshl_b32 s43, s32, 1", "s_add_u32 s42, s42, s43")
        lab = "L_g1_h%d" % silu_store.n; silu_store.n += 1
        for ct in range(2):
            a("s_cmp_ge_u32 s42, %d" % (54 - ct), "s_cbranch_scc1 %s" % lab)
            for rt in range(2):
                r0 = acc(1, rt, ct)
                T = 64
                for i in range(0, 16, 2): a("v_pk_mul_f32 %s, %s, s[40:41]" % (v(T + i, 2), v(r0 + i, 2)))
                for i in range(16): a("v_exp_f32 v%d, v%d" % (T + i, T + i))
                for i in range(0, 16, 2): a("v_pk_add_f32 %s, %s, 1.0 op_sel_hi:[1,0]" % (v(T + i, 2), v(T + i, 2)))
                for i in range(16): a("v_rcp_f32 v%d, v%d" % (T + i, T + i))
                for i in range(0, 16, 2): a("v_pk_mul_f32 %s, %s, %s" % (v(T + i, 2), v(T + i, 2), v(r0 + i, 2)))
                for i in range(8): a("v_cvt_pk_bf16_f32 v%d, v%d, v%d" % (r0 + i, T + 2 * i, T + 2 * i + 1))
                for sp in range(2):
                    a("buffer_store_dwordx4 %s, v96, s[20:23], s%d offen offset:%d" % (v(r0 + 4 * sp, 4), 38 + rt, (2 * ct + sp) * 1024))
        a.label(lab)
        a("s_endpgm")
    silu_store.n = 0

    a("s_lshl_b32 s33, s25, 5", "s_lshl_b32 s34, s32, 4", "s_add_u32 s33, s33, s34")
    a("s_lshl_b32 s40, s36, 10", "s_add_u32 s40, s40, s35",
      "s_lshl_b32 s41, s36, 8", "s_add_u32 s41, s41, s35", "s_add_u32 s41, s41, 8192")
    a("v_lshlrev_b32 v97, 4, v3", "v_add_u32 v97, s40, v97", "v_lshlrev_b32 v98, 3, v3", "v_add_u32 v98, s41, v98")
    a("s_mov_b32 s42, %d" % SLOT, "v_mov_b32 v99, 1024", "v_mov_b32 v100, 256")
    for ct in range(2):
        for g in range(4):
            d = 104 + 2 * (4 * ct + g)
            a("s_add_u32 s34, s33, %d" % (8 * ct + 2 * g), "v_add_u32 v5, s34, v4",
              "v_mul_u32_u24 v6, 205, v5", "v_lshrrev_b32 v6, 10, v6",
              "v_mul_u32_u24 v7, 5, v6", "v_sub_u32 v7, v5, v7",
              "v_cmp_gt_u32 vcc, 4, v7",
              "v_lshrrev_b32 v5, 1, v7", "v_lshl_add_u32 v5, v5, 9, v97", "v_and_b32 v7, 1, v7", "v_lshl_add_u32 v5, v7, 3, v5",
              "v_cndmask_b32 v5, v98, v5, vcc", "v_cndmask_b32 v7, v100, v99, vcc",
              "v_mad_u32_u24 v%d, v6, s42, v5" % d, "v_add_u32 v%d, v%d, v7" % (d + 1, d))
    a("s_cmp_lt_u32 s25, 5", "s_cselect_b32 s44, 0x%08x, 1.0" % f2u(QSCALE), "s_mov_b32 s45, s44")
    mainloop(False)
    for ct in range(2):
        for rt in range(2):
            r0 = acc(0, rt, ct)
            for i in range(0, 16, 2): a("v_pk_mul_f32 %s, %s, s[44:45]" % (v(r0 + i, 2), v(r0 + i, 2)))
            for i in range(8): a("v_cvt_pk_bf16_f32 v%d, v%d, v%d" % (r0 + i, r0 + 2 * i, r0 + 2 * i + 1))
            for g in range(4):
                a("buffer_store_dwordx2 %s, v%d, s[20:23], 0 offen" % (v(r0 + 2 * g, 2), 104 + 2 * (4 * ct + g) + rt))
    silu_store()

    a.label("L_g1_v")
    a("s_sub_u32 s33, s25, 10", "s_lshl_b32 s33, s33, 7", "s_lshl_b32 s34, s32, 6", "s_add_u32 s33, s33, s34")
    a("s_mul_i32 s40, s36, 1280", "s_add_u32 s40, s40, s35", "s_add_u32 s40, s40, %d" % (32 * SLOT + 10240), "s_mov_b32 s42, %d" % SLOT)
    a("v_mul_u32_u24 v97, 320, v4", "v_add_u32 v97, s40, v97")
    for ct in range(2):
        a("s_add_u32 s34, s33, %d" % (32 * ct), "v_add_u32 v5, s34, v3",
          "v_mul_u32_u24 v6, 3277, v5", "v_lshrrev_b32 v6, 16, v6", "v_mul_u32_u24 v7, 20, v6", "v_sub_u32 v7, v5, v7",
          "v_lshl_add_u32 v7, v7, 4, v97", "v_mad_u32_u24 v%d, v6, s42, v7" % (104 + ct))
    mainloop(True)
    for ct in range(2):
        for rt in range(2):
            r0 = acc(0, rt, ct)
            for i in range(8): a("v_cvt_pk_bf16_f32 v%d, v%d, v%d" % (r0 + i, r0 + 2 * i, r0 + 2 * i + 1))
            for j in range(2):
                a("buffer_store_dwordx4 %s, v%d, s[20:23], 0 offen offset:%d" % (v(r0 + 4 * j, 4), 104 + ct, rt * 1280 + j * 640))
    silu_store()

    a.label("L_g1_loader")
    a("s_sub_u32 s26, s26, 4")
    a("s_lshl_b32 s30, s24, 7", "s_lshl_b32 s31, s26, 5", "s_add_u32 s30, s30, s31",
      "v_lshrrev_b32 v3, 3, v2", "v_add_u32 v3, s30, v3", "v_mul_u32_u24 v3, 1280, v3",
      "v_and_b32 v4, 7, v2", "v_lshrrev_b32 v5, 4, v2")
    for i in range(4):
        a("v_xor_b32 v6, %d, v5" % (4 * (i & 1)), "v_xor_b32 v6, v6, v4", "v_lshl_add_u32 v6, v6, 4, v3",
          "v_add_u32 v%d, %d, v6" % (8 + i, i * (8 * 1280 - 1024)))
    a("s_lshl_b32 s30, s26, 4", "v_add_u32 v3, s30, v5",
      "v_and_b32 v4, 15, v2", "v_lshlrev_b32 v6, 2, v5", "v_xor_b32 v4, v4, v6", "v_lshlrev_b32 v4, 4, v4",
      "s_lshl_b32 s30, s25, 8", "v_add_u32 v4, s30, v4",
      "s_movk_i32 s31, 3840", "v_mad_u32_u24 v6, v3, s31, v4", "s_movk_i32 s31, 3456", "v_mad_u32_u24 v7, v3, s31, v4")
    for i in range(4):
        a("v_add_u32 v%d, %d, v6" % (12 + i, i * (4 * 3840 - 1024)), "v_add_u32 v%d, %d, v7" % (16 + i, i * (4 * 3456 - 1024)))
    a("s_lshl_b32 s30, s26, 12")
    def issue(t):
        so = (t % 3) * 16384
        for reg, base, srdn, koff in ((8, XR, 8, t * 128), (12, WAR, 12, t * 64 * 3840), (16, WBR, 16, t * 64 * 3456)):
            a("s_add_u32 m0, s30, %d" % (base + so), "s_mov_b32 s31, %d" % koff)
            for i in range(4):
                a("buffer_load_dwordx4 v%d, %s, s31 offen offset:%d lds" % (reg + i, s(srdn, 4), i * 1024))
    for t in range(3): issue(t)
    for t in range(10):
        n = 24 if t == 0 else (12 if t < 9 else 0)
        a("s_waitcnt vmcnt(%d)" % n, "s_barrier")
        if t >= 1 and t + 2 <= 9: issue(t + 2)
    a.label("L_g1_end")
    a("s_endpgm")
    return a, 256

def k_attn(opt):
    a = Asm()
    QA, QB, NEGM, O = 8, 12, 16, 32
    S = (48, 80)
    KA, KB, V = (112, 116), 120, 124
    aK, aB, aV, aD = 140, 141, 142, 143
    a("s_cmp_ge_u32 s2, 256", "s_cbranch_scc1 L_at_end")
    a("s_load_dwordx2 s[4:5], s[0:1], 64")
    a("s_and_b32 s3, s2, 7", "s_lshl_b32 s3, s3, 2", "s_lshr_b32 s27, s2, 6", "s_add_u32 s24, s3, s27",
      "s_lshr_b32 s25, s2, 3", "s_and_b32 s25, s25, 7")
    a("v_lshrrev_b32 v1, 6, v0", "v_and_b32 v2, 63, v0", "v_readfirstlane_b32 s26, v1",
      "v_and_b32 v3, 31, v2", "v_lshrrev_b32 v4, 5, v2")
    a("v_lshlrev_b32 v%d, 4, v2" % aK, "v_lshlrev_b32 v%d, 3, v2" % aB, "v_add_u32 v%d, 8192, v%d" % (aB, aB),
      "v_mul_u32_u24 v5, 320, v4", "v_lshl_add_u32 v5, v3, 4, v5", "v_add_u32 v%d, 10240, v5" % aV)
    a("s_mul_i32 s28, s26, 2560", "v_add_u32 v%d, s28, v%d" % (aD, aK))
    a("s_mul_i32 s29, s24, %d" % SLOT, "s_mul_i32 s30, s25, %d" % CHUNK, "s_add_u32 s30, s30, s29",
      "s_add_u32 s29, s29, %d" % (32 * SLOT))
    a("s_lshl_b32 s31, s26, 10", "s_add_u32 s31, s31, s30", "s_lshl_b32 s32, s26, 8", "s_add_u32 s32, s32, s30", "s_add_u32 s32, s32, 8192")
    a("v_lshlrev_b32 v6, 3, v3")
    a("s_mov_b32 s34, 0x000fffff", "s_mov_b32 s35, 0x000fffff")
    a("s_waitcnt lgkmcnt(0)")
    srd(a, 8, 4, 5, WS_XF)
    srd(a, 12, 4, 5, XF_BYTES, WS_XF)
    def dma(c):
        return ["s_add_u32 m0, s28, %d" % ((c % 3) * CHUNK), "s_add_u32 s33, s29, %d" % (c * CHUNK),
                "buffer_load_dwordx4 v%d, s[8:11], s33 offen lds" % aD,
                "buffer_load_dwordx4 v%d, s[8:11], s33 offen offset:1024 lds" % aD,
                "s_mov_b32 exec_hi, 0",
                "buffer_load_dwordx4 v%d, s[8:11], s33 offen offset:2048 lds" % aD,
                "s_mov_b32 exec_hi, -1"]
    a(dma(0))
    a("buffer_load_dwordx4 %s, v%d, s[8:11], s31 offen" % (v(QA, 4), aK),
      "buffer_load_dwordx2 %s, v6, s[8:11], s32 offen" % v(QB, 2))
    a(dma(1))
    for i in range(16): a("v_mov_b32 v%d, 0x3f803f80" % (V + i))
    def koff(p): return ((p // 4) % 3) * CHUNK
    def kreads(p):
        so = koff(p); q = p % 4
        return ["ds_read_b128 %s, v%d offset:%d" % (v(KA[0], 4), aK, so + 2 * q * 1024),
                "ds_read_b128 %s, v%d offset:%d" % (v(KA[1], 4), aK, so + (2 * q + 1) * 1024),
                "ds_read_b64 %s, v%d offset:%d" % (v(KB, 2), aB, so + q * 512)]
    def vreads(p):
        so = koff(p); q = p % 4
        return ["s_mov_b64 exec, s[34:35]"] + \
               ["ds_read_b128 %s, v%d offset:%d" % (v(V + 4 * i, 4), aV, so + 2 * q * 1280 + i * 640) for i in range(4)] + \
               ["s_mov_b64 exec, -1"]
    def Y(dst, half, c): return "v_mfma_f32_32x32x16_bf16 %s, %s, %s, %s" % (v(dst + 16 * half, 16), v(KA[half], 4), v(QA, 4), c)
    def X(dst): return "v_mfma_f32_32x32x4_2b_bf16 %s, %s, %s, %s" % (v(dst, 32), v(KB, 2), v(QB, 2), v(dst, 32))
    def PV(src, i, first): return "v_mfma_f32_32x32x16_bf16 %s, %s, %s, %s" % (v(O, 16), v(V + 4 * i, 4), v(src + 8 * i, 4), "0" if first else v(O, 16))
    def half(src, g, h):
        r = src + 8 * g + 4 * h
        return ["v_exp_f32 v%d, v%d" % (r + i, r + i) for i in range(4)] + \
               ["v_cvt_pk_bf16_f32 v%d, v%d, v%d" % (src + 8 * g + 2 * h + i, r + 2 * i, r + 2 * i + 1) for i in range(2)]
    def rowmax(src, n):
        a("v_max3_f32 v5, v%d, v%d, v%d" % (src, src + 1, src + 2))
        for i in range(3, n - 1, 2): a("v_max3_f32 v5, v5, v%d, v%d" % (src + i, src + i + 1))
        a("v_max_f32 v5, v5, v%d" % (src + n - 1))
    def crosshalf_max():
        a("v_mov_b32 v7, v5", "s_nop 1", "v_permlane32_swap_b32 v5, v7", "v_max_f32 v5, v5, v7")
    a("s_waitcnt vmcnt(3)", "s_barrier")
    a(kreads(0), vreads(0), "s_waitcnt lgkmcnt(4)")
    a(Y(S[0], 0, "0"), Y(S[0], 1, "0"), "s_nop 9", X(S[0]), "s_nop 15", "s_nop 3")
    rowmax(S[0], 32); crosshalf_max()
    for i in range(16): a("v_sub_f32 v%d, 0, v5" % (NEGM + i))
    a("s_nop 1", Y(S[0], 0, v(NEGM, 16)), Y(S[0], 1, v(NEGM, 16)), "s_nop 9", X(S[0]))
    a(kreads(1), "s_nop 15")
    for p in range(32):
        cur, nxt = S[p & 1], S[(p + 1) & 1]
        last = p == 31
        if opt.get("prio"): a("s_setprio %d" % (3 - ((p + 2) % 4)))
        a("s_waitcnt lgkmcnt(0)")
        if not last: a(Y(nxt, 0, v(NEGM, 16)))
        a(half(cur, 0, 0))
        if p > 0:
            a(PV(nxt, 3, False))
            a(vreads(p))
        a(half(cur, 0, 1))
        if not last: a(Y(nxt, 1, v(NEGM, 16)))
        a(half(cur, 1, 0))
        if p > 0: a("s_waitcnt lgkmcnt(3)")
        a(PV(cur, 0, p == 0))
        a(half(cur, 1, 1))
        a("s_waitcnt lgkmcnt(0)")
        if not last: a(X(nxt))
        if p % 4 == 2 and p < 28:
            c = p // 4 + 1
            a("s_waitcnt vmcnt(0)", "s_barrier")
            if c + 1 <= 7: a(dma(c + 1))
        if p < 30: a(kreads(p + 2))
        a(half(cur, 2, 0), half(cur, 2, 1))
        a(PV(cur, 1, False))
        a(half(cur, 3, 0))
        a(PV(cur, 2, False))
        a(half(cur, 3, 1))
    a("s_nop 1", PV(S[1], 3, False), "s_nop 11")
    a("v_mov_b32 v7, 0x5d800000", "v_cmp_nlt_f32 vcc, v%d, v7" % (O + 12), "s_nop 1", "s_cbranch_vccnz L_at_slow")
    a.label("L_at_fin")
    a("v_rcp_f32 v5, v%d" % (O + 12), "s_nop 0")
    for i in range(12): a("v_mul_f32 v%d, v%d, v5" % (O + i, O + i))
    for i in range(6): a("v_cvt_pk_bf16_f32 v%d, v%d, v%d" % (O + i, O + 2 * i, O + 2 * i + 1))
    a("s_lshl_b32 s36, s25, 3", "s_add_u32 s36, s36, s26", "s_mul_i32 s36, s36, 148",
      "s_add_u32 s37, s36, s24", "s_lshl_b32 s37, s37, 10",
      "s_lshr_b32 s38, s24, 2", "s_add_u32 s38, s38, s36", "s_add_u32 s38, s38, 32", "s_lshl_b32 s38, s38, 10",
      "s_bfe_u32 s39, s24, 0x10001", "s_lshl_b32 s39, s39, 9", "s_add_u32 s38, s38, s39",
      "s_and_b32 s39, s24, 1", "s_lshl_b32 s39, s39, 3", "s_add_u32 s38, s38, s39")
    a("buffer_store_dwordx4 %s, v%d, s[12:15], s37 offen" % (v(O, 4), aK),
      "s_mov_b32 exec_hi, 0",
      "buffer_store_dwordx2 %s, v%d, s[12:15], s38 offen" % (v(O + 4, 2), aK))
    a.label("L_at_end")
    a("s_endpgm")
    a.label("L_at_slow")
    def gk():
        return ["buffer_load_dwordx4 %s, v%d, s[8:11], s41 offen" % (v(KA[0], 4), aK),
                "buffer_load_dwordx4 %s, v%d, s[8:11], s41 offen offset:1024" % (v(KA[1], 4), aK),
                "buffer_load_dwordx2 %s, v%d, s[8:11], s42 offen" % (v(KB, 2), aB)]
    def addr():
        return ["s_lshr_b32 s44, s40, 2", "s_mul_i32 s44, s44, %d" % CHUNK, "s_add_u32 s44, s44, s29", "s_and_b32 s45, s40, 3",
                "s_lshl_b32 s41, s45, 11", "s_add_u32 s41, s41, s44", "s_lshl_b32 s42, s45, 9", "s_add_u32 s42, s42, s44",
                "s_mul_i32 s43, s45, 2560", "s_add_u32 s43, s43, s44"]
    a("s_mov_b32 s40, 0", "v_mov_b32 v6, 0xff800000")
    a.label("L_at_s1")
    a(addr(), gk(), "s_waitcnt vmcnt(0)")
    a(Y(S[0], 0, "0"), Y(S[0], 1, "0"), "s_nop 9", X(S[0]), "s_nop 15", "s_nop 3")
    rowmax(S[0], 32)
    a("v_max_f32 v6, v6, v5", "s_add_u32 s40, s40, 1", "s_cmp_lt_u32 s40, 32", "s_cbranch_scc1 L_at_s1")
    a("v_mov_b32 v5, v6"); crosshalf_max()
    for i in range(16): a("v_sub_f32 v%d, 0, v5" % (NEGM + i), "v_mov_b32 v%d, 0" % (O + i))
    a("s_mov_b32 s40, 0")
    a.label("L_at_s2")
    a(addr(), gk(), "s_mov_b64 exec, s[34:35]")
    for i in range(4): a("buffer_load_dwordx4 %s, v%d, s[8:11], s43 offen offset:%d" % (v(V + 4 * i, 4), aV, i * 640))
    a("s_mov_b64 exec, -1", "s_waitcnt vmcnt(0)")
    a(Y(S[0], 0, v(NEGM, 16)), Y(S[0], 1, v(NEGM, 16)), "s_nop 9", X(S[0]), "s_nop 15", "s_nop 3")
    for g in range(4): a(half(S[0], g, 0), half(S[0], g, 1))
    a("s_nop 1")
    for i in range(4): a(PV(S[0], i, False))
    a("s_add_u32 s40, s40, 1", "s_cmp_lt_u32 s40, 32", "s_cbranch_scc1 L_at_s2")
    a("s_nop 11", "s_branch L_at_fin")
    return a, 144

def k_out():
    a = Asm()
    PW = 96 * 272
    ACC, XB, WF, XRES = 128, 64, 32, 48
    a("s_cmp_ge_u32 s2, 240", "s_cbranch_scc1 L_o_end")
    a("s_load_dwordx2 s[4:5], s[0:1], 64", "s_load_dwordx2 s[6:7], s[0:1], 16", "s_load_dwordx2 s[28:29], s[0:1], 40",
      "s_load_dwordx2 s[30:31], s[0:1], 0", "s_load_dwordx2 s[32:33], s[0:1], 48")
    a("s_and_b32 s3, s2, 7", "s_lshr_b32 s27, s2, 3", "s_mul_i32 s24, s27, 26", "s_lshr_b32 s24, s24, 8",
      "s_mul_i32 s25, s24, 10", "s_sub_u32 s25, s27, s25", "s_lshl_b32 s24, s24, 3", "s_add_u32 s24, s24, s3",
      "s_cmp_ge_u32 s24, 22", "s_cbranch_scc1 L_o_end")
    a("v_lshrrev_b32 v1, 6, v0", "v_and_b32 v2, 63, v0", "v_readfirstlane_b32 s26, v1",
      "v_and_b32 v3, 31, v2", "v_lshrrev_b32 v4, 5, v2")
    a("s_waitcnt lgkmcnt(0)")
    srd(a, 8, 4, 5, XF_BYTES, WS_XF)
    srd(a, 16, 30, 31, X_BYTES)
    srd(a, 20, 32, 33, X_BYTES)
    a("s_cmp_eq_u32 s26, 0", "s_cselect_b32 s12, s6, s28", "s_cselect_b32 s13, s7, s29",
      "s_mov_b32 s14, %d" % (1728 * 1280),
      "s_cselect_b32 s14, %d, s14" % (640 * 1280), "s_mov_b32 s15, 0x00020000",
      "s_mov_b32 s36, %d" % (16 * 1280),
      "s_cselect_b32 s36, %d, s36" % (20 * 1280),
      "s_cselect_b32 s37, 10, 9")
    a("v_lshrrev_b32 v5, 3, v0", "s_mul_i32 s38, s24, 96", "v_add_u32 v5, s38, v5", "v_mul_u32_u24 v5, 1280, v5",
      "v_and_b32 v6, 7, v0", "v_lshl_add_u32 v5, v6, 4, v5", "s_lshl_b32 s38, s25, 7", "v_add_u32 v20, s38, v5",
      "v_add_u32 v21, %d, v20" % (32 * 1280), "v_add_u32 v22, %d, v20" % (64 * 1280))
    for k in range(3): a("buffer_load_dwordx4 %s, v%d, s[16:19], 0 offen" % (v(XRES + 4 * k, 4), 20 + k))
    a("s_mul_i32 s34, s24, %d" % (3 * 148), "s_mul_i32 s39, s26, 36", "s_add_u32 s39, s39, 4", "s_cmp_eq_u32 s26, 0", "s_cselect_b32 s39, 0, s39",
      "s_add_u32 s34, s34, s39", "s_lshl_b32 s34, s34, 10")
    a("v_lshlrev_b32 v8, 4, v2", "v_add_u32 v9, %d, v8" % (148 * 1024), "v_add_u32 v10, %d, v8" % (2 * 148 * 1024))
    a("s_sub_u32 s35, s26, 1", "s_mul_i32 s35, s35, %d" % (36 * 16 * 1280), "s_cmp_eq_u32 s26, 0", "s_cselect_b32 s35, 0, s35")
    a("v_lshrrev_b32 v5, 3, v2", "v_and_b32 v6, 7, v2", "v_bfe_u32 v7, v2, 4, 1", "v_lshlrev_b32 v7, 2, v7", "v_xor_b32 v6, v6, v7",
      "v_lshlrev_b32 v6, 4, v6", "v_add_u32 v6, s38, v6",
      "s_movk_i32 s39, 1280", "v_mad_u32_u24 v11, v5, s39, v6", "v_add_u32 v12, %d, v11" % (8 * 1280 - 1024))
    a("v_lshrrev_b32 v7, 2, v5", "v_mul_u32_u24 v7, 40, v7", "v_and_b32 v5, 3, v5", "v_add3_u32 v5, v5, v7, 16",
      "v_mad_u32_u24 v13, v5, s39, v6", "v_add_u32 v14, %d, v13" % (20 * 1280 - 1024))
    a("s_mul_i32 s40, s26, %d" % PW,
      "v_bfe_u32 v5, v2, 2, 2", "v_lshl_add_u32 v6, v4, 2, v5", "v_lshlrev_b32 v6, 7, v6",
      "v_bfe_u32 v7, v2, 4, 1", "v_lshl_add_u32 v6, v7, 5, v6", "v_and_b32 v7, 3, v2", "v_lshl_add_u32 v6, v7, 3, v6",
      "v_add_u32 v6, s40, v6", "v_lshrrev_b32 v5, 1, v5", "v_lshl_add_u32 v15, v5, 6, v6", "v_xor_b32 v16, 64, v15")
    for i in range(96): a("v_mov_b32 v%d, 0" % (ACC + i))
    def loads(i):
        L = ["s_add_u32 m0, s40, %d" % (i * 2048)]
        L += ["buffer_load_dwordx4 %s, v%d, s[8:11], s34 offen" % (v(XB + 12 * i + 4 * rt, 4), 8 + rt) for rt in range(3)]
        L += ["buffer_load_dwordx4 v11, s[12:15], s35 offen lds", "buffer_load_dwordx4 v12, s[12:15], s35 offen offset:1024 lds",
              "s_add_u32 s34, s34, 1024", "s_add_u32 s35, s35, s36"]
        return L
    def trreads(i):
        b = i & 1
        return ["ds_read_b64_tr_b16 %s, v%d offset:%d" % (v(WF + 8 * b + 4 * ct + 2 * u, 2), 15 + ct, (i % 4) * 2048 + u * 1024) for ct in range(2) for u in range(2)]
    for i in range(4): a(loads(i))
    a("s_waitcnt vmcnt(15)", trreads(0), "s_mov_b32 s41, 0")
    a.label("L_o_loop")
    a("s_add_u32 s41, s41, 1",
      "s_cmp_eq_u32 s41, s37", "s_cbranch_scc0 L_o_n1", "s_mov_b32 s10, 0", "s_mov_b32 s14, 0", "s_mov_b32 s36, 0")
    a.label("L_o_n1")
    a("s_lshl_b32 s42, s26, 8", "s_add_u32 s42, s42, s41", "s_cmp_eq_u32 s42, 8", "s_cbranch_scc0 L_o_n2",
      "v_mov_b32 v11, v13", "v_mov_b32 v12, v14", "s_mov_b32 s35, 0", "s_mov_b32 s36, %d" % (80 * 1280))
    a.label("L_o_n2")
    body = Asm()
    for i in range(4):
        body("s_waitcnt vmcnt(10)", trreads(i + 1), "s_waitcnt lgkmcnt(4)")
        b = i & 1
        for ct in range(2):
            for rt in range(3):
                d = v(ACC + 16 * (2 * rt + ct), 16)
                body("v_mfma_f32_32x32x16_bf16 %s, %s, %s, %s" % (d, v(WF + 8 * b + 4 * ct, 4), v(XB + 12 * i + 4 * rt, 4), d))
        body(loads(i))
    a(body.L)
    a("s_cmp_lt_u32 s41, s37", "s_cbranch_scc1 L_o_loop")
    a("s_waitcnt vmcnt(0) lgkmcnt(0)", "s_nop 7")
    a("v_mul_u32_u24 v5, 272, v3", "v_lshl_add_u32 v5, v4, 4, v5", "v_add_u32 v5, s40, v5")
    for rt in range(3):
        for ct in range(2):
            for g in range(4):
                a("ds_write_b128 v5, %s offset:%d" % (v(ACC + 16 * (2 * rt + ct) + 4 * g, 4), rt * 32 * 272 + ct * 128 + g * 32))
    a("v_lshrrev_b32 v5, 3, v0", "v_mul_u32_u24 v5, 272, v5", "v_and_b32 v6, 7, v0", "v_lshl_add_u32 v5, v6, 5, v5", "v_add_u32 v6, %d, v5" % (2 * PW))
    a("s_waitcnt lgkmcnt(0)", "s_barrier")
    for k in range(3):
        R = 128 + 32 * k
        for w in range(4):
            for hh in range(2):
                a("ds_read_b128 %s, v%d offset:%d" % (v(R + 8 * w + 4 * hh, 4), 5 + (w >> 1), (w & 1) * PW + k * 32 * 272 + hh * 16))
    for k in range(3):
        R = 128 + 32 * k
        a("s_waitcnt lgkmcnt(%d)" % min(15, 8 * (2 - k)))
        for i in range(4):
            a("v_lshlrev_b32 v%d, 16, v%d" % (32 + 2 * i, XRES + 4 * k + i), "v_and_b32 v%d, 0xffff0000, v%d" % (33 + 2 * i, XRES + 4 * k + i))
        if k == 0: a("s_waitcnt lgkmcnt(15)")
        for w in range(4):
            for i in range(0, 8, 2):
                a("v_pk_add_f32 %s, %s, %s" % (v(32 + i, 2), v(32 + i, 2), v(R + 8 * w + i, 2)))
        for i in range(4): a("v_cvt_pk_bf16_f32 v%d, v%d, v%d" % (R + i, 32 + 2 * i, 33 + 2 * i))
        a("buffer_store_dwordx4 %s, v%d, s[20:23], 0 offen" % (v(R, 4), 20 + k))
    a.label("L_o_end")
    a("s_endpgm")
    return a, 224, body

def build(opt):
    ks = []
    a, n = k_ln(); ks.append(("ln_kernel", a, n, 256, 256, 0))
    a, n = k_gemm1(); ks.append(("gemm1_kernel", a, n, 256, 512, 147456))
    a, n = k_attn(opt); ks.append(("attn_kernel", a, n, 256, 512, 3 * CHUNK))
    a, n, body = k_out(); ks.append(("out_kernel", a, n, 240, 256, 4 * 96 * 272))
    errs = check(body.L + body.L, "out loop")
    hdr = open("cdna_kernels/%s.s.ref" % NAME).read().split("; Override launch")[0]
    out = hdr
    for name, a, n, g, b, lds in ks:
        out += "; @launch kernel=%s grid=(%d,1,1) block=(%d,1,1) lds=%d\n" % (name, g, b, lds)
    out += '.amdgcn_target "amdgcn-amd-amdhsa--gfx950"\n.text\n'
    for name, a, n, g, b, lds in ks:
        errs += check(a.L, name)
        out += ".globl %s\n.p2align 8\n.type %s,@function\n%s:\n" % (name, name, name)
        out += a.text() + descriptor(name, n)
    for e in errs: print("HAZARD", e, file=sys.stderr)
    return out, errs

if __name__ == "__main__":
    opt = {}
    path = "cdna_kernels/%s.s" % NAME
    for x in sys.argv[1:]:
        if x.startswith("-o"): path = x[2:]
        else:
            k, _, val = x.partition("=")
            opt[k] = int(val) if val else 1
    txt, errs = build(opt)
    open(path, "w").write(txt)
    print("wrote", path, len(txt), "bytes;", len(errs), "hazards")
```
